```python
import torch

def _softmax(x, axis=-1):
    return torch.softmax(x, dim=axis)
def _gelu(x):
    return torch.nn.functional.gelu(x, approximate="tanh")
def _silu(x):
    return torch.nn.functional.silu(x)
def _sigmoid(x):
    return torch.sigmoid(x)
def _layernorm(x, axis=-1, eps=1e-5):
    m = x.mean(dim=axis, keepdim=True)
    v = x.var(dim=axis, keepdim=True, unbiased=False)
    return (x - m) / torch.sqrt(v + eps)
def _scatter_add(tgt, idx, src, axis=0):
    return tgt.clone().index_add_(axis, idx, src)
def _segment_sum(src, seg, n):
    out = torch.zeros((n,) + src.shape[1:], dtype=src.dtype)
    return out.index_add_(0, seg, src)
def _pad(x, pw):
    flat = tuple(v for pair in reversed(pw) for v in pair)
    return torch.nn.functional.pad(x, flat)

kernel_name = 'standalone__low_rank_proj_linformer__decode'

def setup_inputs():

    _w = (lambda a: (lambda t: t.to(torch.bfloat16) if t.is_floating_point() else t)(torch.as_tensor(a)))
    B, H, Sq, Skv, Dh, R = 4, 16, 1, 8192, 256, 64
    return {
        "q": _w((lambda *s: torch.randn(*s, dtype=torch.bfloat16) * 0.8)(B, H, Sq, Dh)),
        "k": _w((lambda *s: torch.randn(*s, dtype=torch.bfloat16) * 0.8)(B, H, Skv, Dh)),
        "v": _w((lambda *s: torch.randn(*s, dtype=torch.bfloat16) * 0.05)(B, H, Skv, Dh)),
        "e_proj": _w((lambda *s: torch.randn(*s, dtype=torch.bfloat16) * 0.8)(R, Skv) * (Skv ** -0.5)),
        "f_proj": _w((lambda *s: torch.randn(*s, dtype=torch.bfloat16) * 0.05)(R, Skv) * (Skv ** -0.5)),
    }

def reference(q, k, v, e_proj, f_proj):
    B, H, Sq, Dh = q.shape
    kp = torch.einsum("rn,bhnd->bhrd", e_proj, k)
    vp = torch.einsum("rn,bhnd->bhrd", f_proj, v)
    scores = torch.einsum("bhqd,bhrd->bhqr", q, kp) * (Dh ** -0.5)
    p = _softmax(scores, axis=-1)
    o = torch.einsum("bhqr,bhrd->bhqd", p, vp)
    return o
```

```python
import sys
from asmlib import *
def gen(name, G=256, W=4, L=8, S=4, nt=0, mode="dma", pat=0, sc="", bar=0, extra=0, pk=0, pseg=128):
    total = 512<<20
    per_wg = total//2//G
    tile = L*1024
    ntiles_wave = per_wg//(W*tile)
    assert ntiles_wave*W*tile==per_wg
    flags = (" nt" if nt else "")+sc
    b=[]
    a=b.append
    a(f"  s_cmp_ge_u32 s2, {G}")
    a("  s_cbranch_scc1 L_done")
    a("  s_memrealtime s[40:41]")
    a("  s_load_dwordx4 s[4:7], s[0:1], 8")
    a("  s_load_dwordx2 s[20:21], s[0:1], 56")
    a("  s_load_dwordx2 s[28:29], s[0:1], 24")
    a("  v_lshrrev_b32 v1, 6, v0")
    a("  v_and_b32 v2, 63, v0")
    a("  v_lshlrev_b32 v2, 4, v2")
    a("  s_nop 0")
    a("  v_readfirstlane_b32 s3, v1")
    a("  s_waitcnt lgkmcnt(0)")
    a("  s_mov_b32 s8, s4"); a("  s_mov_b32 s9, s5"); a("  s_mov_b32 s10, 0x10000000"); a("  s_mov_b32 s11, 0x20000")
    a("  s_mov_b32 s12, s6"); a("  s_mov_b32 s13, s7"); a("  s_mov_b32 s14, 0x10000000"); a("  s_mov_b32 s15, 0x20000")
    a("  s_mov_b32 s32, s28"); a("  s_mov_b32 s33, s29"); a("  s_mov_b32 s34, 0x100000"); a("  s_mov_b32 s35, 0x20000")
    a("  v_and_b32 v3, 63, v0")
    if pseg==128:
        a("  v_lshrrev_b32 v4, 3, v3"); a("  v_and_b32 v3, 7, v3")
    else:
        a("  v_lshrrev_b32 v4, 2, v3"); a("  v_and_b32 v3, 3, v3")
    a("  v_lshlrev_b32 v4, 14, v4"); a("  v_lshlrev_b32 v3, 4, v3"); a("  v_add_u32 v12, v3, v4")
    a("  s_lshr_b32 s36, s2, 3"); a("  s_lshl_b32 s36, s36, 8"); a("  s_lshl_b32 s37, s3, 18"); a("  s_add_u32 s36, s36, s37")
    a("  s_mov_b32 s37, 0")
    if pat==0:
        a(f"  s_mul_i32 s16, s2, {per_wg}")
        a(f"  s_mul_i32 s17, s3, {tile}")
        a("  s_add_u32 s16, s16, s17")
        step = W*tile
    elif pat==1:
        a(f"  s_mul_i32 s16, s2, {per_wg}")
        a(f"  s_mul_i32 s17, s3, {per_wg//W}")
        a("  s_add_u32 s16, s16, s17")
        step = tile
    elif pat==2:
        a(f"  s_mul_i32 s16, s2, {W*tile}")
        a(f"  s_mul_i32 s17, s3, {tile}")
        a("  s_add_u32 s16, s16, s17")
        step = G*W*tile
    elif pat==3:
        a("  s_lshr_b32 s16, s2, 2")
        a("  s_lshl_b32 s16, s16, 22")
        a("  s_and_b32 s17, s2, 3")
        a("  s_lshl_b32 s17, s17, 7")
        a("  s_add_u32 s16, s16, s17")
        a(f"  s_mul_i32 s17, s3, {tile*4}")
        a("  s_add_u32 s16, s16, s17")
        a("  v_and_b32 v3, 63, v0")
        a("  v_lshrrev_b32 v4, 3, v3")
        a("  v_lshlrev_b32 v4, 9, v4")
        a("  v_and_b32 v3, 7, v3")
        a("  v_lshlrev_b32 v3, 4, v3")
        a("  v_add_u32 v2, v3, v4")
        step = W*tile*4
    a(f"  s_mul_i32 s18, s3, {S*tile}")
    a(f"  s_add_u32 s19, s18, {S*tile}")
    a("  s_mov_b32 s22, s18")
    a("  s_mov_b32 s23, s16")
    total_tiles = 2*ntiles_wave
    def issue(srd, vbase):
        for i in range(L):
            if mode=="dma":
                if pat==3:
                    a(f"  s_add_u32 m0, s22, {i*1024}")
                    a(f"  s_add_u32 s24, s23, {i*4096}")
                    a(f"  buffer_load_dwordx4 v2, {srd}, s24 offen{flags} lds")
                else:
                    if i%4==0:
                        a(f"  s_add_u32 m0, s22, {i*1024}")
                        a(f"  s_add_u32 s24, s23, {i*1024}")
                    a(f"  buffer_load_dwordx4 v2, {srd}, s24 offen offset:{(i%4)*1024}{flags} lds")
            else:
                r=vbase+4*i
                if pat==3:
                    a(f"  s_add_u32 s24, s23, {i*4096}")
                    a(f"  buffer_load_dwordx4 v[{r}:{r+3}], v2, {srd}, s24 offen{flags}")
                else:
                    if i%4==0:
                        a(f"  s_add_u32 s24, s23, {i*1024}")
                    a(f"  buffer_load_dwordx4 v[{r}:{r+3}], v2, {srd}, s24 offen offset:{(i%4)*1024}{flags}")
        a(f"  s_add_u32 s23, s23, {step}")
        if mode=="dma":
            a(f"  s_add_u32 s22, s22, {tile}")
            a("  s_cmp_ge_u32 s22, s19")
            a("  s_cselect_b32 s22, s18, s22")
    assert ntiles_wave % S == 0 or mode=="dma"
    for ph,srd in enumerate(["s[8:11]","s[12:15]"]):
        a("  s_mov_b32 s23, s16")
        if ph==1: a("  s_memrealtime s[44:45]")
        if mode=="dma":
            a(f"  s_mov_b32 s25, {ntiles_wave}")
            a(f"L_loop{ph}:")
            if bar==2:
                a("  s_barrier")
                issue(srd,0)
                a(f"  s_waitcnt vmcnt({min(63,(S-1)*L)})")
                a("  s_barrier")
            else:
                a(f"  s_waitcnt vmcnt({min(63,(S-1-bar)*L)})")
                if bar: a("  s_barrier")
                issue(srd,0)
            if pk:
                a("  s_add_u32 s37, s37, 1")
                a(f"  s_cmp_lt_u32 s37, {pk}")
                a(f"  s_cbranch_scc1 L_nop{ph}")
                a("  s_mov_b32 s37, 0")
                a("  buffer_load_dwordx4 v12, s[32:35], s36 offen lds")
                a("  s_add_u32 s36, s36, 128")
                a("  s_and_b32 s36, s36, 0xc0fff")
                a(f"L_nop{ph}:")
            for _ in range(extra): a("  s_nop 15")
            a("  s_sub_u32 s25, s25, 1")
            a("  s_cmp_lg_u32 s25, 0")
            a(f"  s_cbranch_scc1 L_loop{ph}")
        else:
            a(f"  s_mov_b32 s25, {ntiles_wave//S}")
            a(f"L_loop{ph}:")
            for sl in range(S):
                a(f"  s_waitcnt vmcnt({min(63,(S-1)*L)})")
                issue(srd, 12+sl*L*4)
            a("  s_sub_u32 s25, s25, 1")
            a("  s_cmp_lg_u32 s25, 0")
            a(f"  s_cbranch_scc1 L_loop{ph}")
    a("  s_waitcnt vmcnt(0)")
    a("  s_barrier")
    a("  s_memrealtime s[42:43]")
    a("  s_getreg_b32 s46, hwreg(HW_REG_XCC_ID)")
    a("  s_cmp_lg_u32 s3, 0")
    a("  s_cbranch_scc1 L_done")
    a("  s_waitcnt lgkmcnt(0)")
    a("  v_mov_b32 v4, s40"); a("  v_mov_b32 v5, s41"); a("  v_mov_b32 v6, s42"); a("  v_mov_b32 v7, s43")
    a("  s_lshl_b32 s26, s2, 5")
    a("  s_add_u32 s26, s26, 0x20000000")
    a("  s_add_u32 s20, s20, s26")
    a("  s_addc_u32 s21, s21, 0")
    a("  v_mov_b32 v1, 0")
    a("  global_store_dwordx4 v1, v[4:7], s[20:21]")
    a("  v_mov_b32 v8, s44"); a("  v_mov_b32 v9, s45"); a("  v_mov_b32 v10, s46"); a("  v_mov_b32 v11, s2")
    a("  global_store_dwordx4 v1, v[8:11], s[20:21] offset:16")
    a("L_done:")
    a("  s_endpgm")
    nv = 16 if mode=="dma" else 12+S*L*4
    nv = max(nv,16)
    lds = W*S*tile if mode=="dma" else 0
    src = wrap(name,"\n".join(b),nv,64,(nv+3)//4*4,W*64)
    return src, lds
if __name__=="__main__":
    cfgs = eval(sys.argv[1])
    lines=[]
    for i,c in enumerate(cfgs):
        nm=f"st{i}"
        src,lds=gen(nm,**c)
        if "lds" in c: pass
        assemble(src,f"{nm}.co")
        lines.append(f"echo \"{c}\"; ./bench {nm}.co {nm}:{c.get('G',256)}:{c.get('W',4)*64}:{lds} 15 0 1 2")
    open("run.sh","w").write("\n".join(lines)+"\n")
    print(" ".join(f'"bench/st{i}.co",' for i in range(len(cfgs))))
```

```python
import sys
from asmlib import *
def gen(name, G=256, W=4, L=8, S=4, nt=0, mode="dma", pat=0, sc="", bar=0, extra=0, pk=0, pseg=128, chunk=32768):
    total = 512<<20
    per_wg = total//2//G
    tile = L*1024
    ntiles_wave = per_wg//(W*tile)
    assert ntiles_wave*W*tile==per_wg
    flags = (" nt" if nt else "")+sc
    b=[]
    a=b.append
    a(f"  s_cmp_ge_u32 s2, {G}")
    a("  s_cbranch_scc1 L_done")
    a("  s_memrealtime s[40:41]")
    a("  s_load_dwordx4 s[4:7], s[0:1], 8")
    a("  s_load_dwordx2 s[20:21], s[0:1], 56")
    a("  s_load_dwordx2 s[28:29], s[0:1], 24")
    a("  v_lshrrev_b32 v1, 6, v0")
    a("  v_and_b32 v2, 63, v0")
    a("  v_lshlrev_b32 v2, 4, v2")
    a("  s_nop 0")
    a("  v_readfirstlane_b32 s3, v1")
    a("  s_waitcnt lgkmcnt(0)")
    a("  s_mov_b32 s8, s4"); a("  s_mov_b32 s9, s5"); a("  s_mov_b32 s10, 0x10000000"); a("  s_mov_b32 s11, 0x20000")
    a("  s_mov_b32 s12, s6"); a("  s_mov_b32 s13, s7"); a("  s_mov_b32 s14, 0x10000000"); a("  s_mov_b32 s15, 0x20000")
    a("  s_mov_b32 s32, s28"); a("  s_mov_b32 s33, s29"); a("  s_mov_b32 s34, 0x100000"); a("  s_mov_b32 s35, 0x20000")
    a("  v_and_b32 v3, 63, v0")
    if pseg==128:
        a("  v_lshrrev_b32 v4, 3, v3"); a("  v_and_b32 v3, 7, v3")
    else:
        a("  v_lshrrev_b32 v4, 2, v3"); a("  v_and_b32 v3, 3, v3")
    a("  v_lshlrev_b32 v4, 14, v4"); a("  v_lshlrev_b32 v3, 4, v3"); a("  v_add_u32 v12, v3, v4")
    a("  s_lshr_b32 s36, s2, 3"); a("  s_lshl_b32 s36, s36, 8"); a("  s_lshl_b32 s37, s3, 18"); a("  s_add_u32 s36, s36, s37")
    a("  s_mov_b32 s37, 0")
    if pat==0:
        a(f"  s_mul_i32 s16, s2, {per_wg}")
        a(f"  s_mul_i32 s17, s3, {tile}")
        a("  s_add_u32 s16, s16, s17")
        step = W*tile
    elif pat==1:
        a(f"  s_mul_i32 s16, s2, {per_wg}")
        a(f"  s_mul_i32 s17, s3, {per_wg//W}")
        a("  s_add_u32 s16, s16, s17")
        step = tile
    elif pat==2:
        a(f"  s_mul_i32 s16, s2, {W*tile}")
        a(f"  s_mul_i32 s17, s3, {tile}")
        a("  s_add_u32 s16, s16, s17")
        step = G*W*tile
    elif pat==4:
        a("  s_lshr_b32 s16, s2, 2")
        a("  s_lshl_b32 s16, s16, 22")
        a("  s_and_b32 s17, s2, 3")
        a(f"  s_mul_i32 s17, s17, {chunk}")
        a("  s_add_u32 s16, s16, s17")
        a(f"  s_mul_i32 s17, s3, {tile}")
        a("  s_add_u32 s16, s16, s17")
        step = W*tile
    elif pat==5:
        a(f"  s_mul_i32 s16, s2, {per_wg}")
        a(f"  s_mul_i32 s17, s3, {tile}")
        a("  s_add_u32 s16, s16, s17")
        step = W*tile
    elif pat==3:
        a("  s_lshr_b32 s16, s2, 2")
        a("  s_lshl_b32 s16, s16, 22")
        a("  s_and_b32 s17, s2, 3")
        a("  s_lshl_b32 s17, s17, 7")
        a("  s_add_u32 s16, s16, s17")
        a(f"  s_mul_i32 s17, s3, {tile*4}")
        a("  s_add_u32 s16, s16, s17")
        a("  v_and_b32 v3, 63, v0")
        a("  v_lshrrev_b32 v4, 3, v3")
        a("  v_lshlrev_b32 v4, 9, v4")
        a("  v_and_b32 v3, 7, v3")
        a("  v_lshlrev_b32 v3, 4, v3")
        a("  v_add_u32 v2, v3, v4")
        step = W*tile*4
    a(f"  s_mul_i32 s18, s3, {S*tile}")
    a(f"  s_add_u32 s19, s18, {S*tile}")
    a("  s_mov_b32 s22, s18")
    a("  s_mov_b32 s23, s16")
    total_tiles = 2*ntiles_wave
    def issue(srd, vbase):
        for i in range(L):
            if mode=="dma":
                if pat==3:
                    a(f"  s_add_u32 m0, s22, {i*1024}")
                    a(f"  s_add_u32 s24, s23, {i*4096}")
                    a(f"  buffer_load_dwordx4 v2, {srd}, s24 offen{flags} lds")
                else:
                    if i%4==0:
                        a(f"  s_add_u32 m0, s22, {i*1024}")
                        a(f"  s_add_u32 s24, s23, {i*1024}")
                    a(f"  buffer_load_dwordx4 v2, {srd}, s24 offen offset:{(i%4)*1024}{flags} lds")
            else:
                r=vbase+4*i
                if pat==3:
                    a(f"  s_add_u32 s24, s23, {i*4096}")
                    a(f"  buffer_load_dwordx4 v[{r}:{r+3}], v2, {srd}, s24 offen{flags}")
                else:
                    if i%4==0:
                        a(f"  s_add_u32 s24, s23, {i*1024}")
                    a(f"  buffer_load_dwordx4 v[{r}:{r+3}], v2, {srd}, s24 offen offset:{(i%4)*1024}{flags}")
        a(f"  s_add_u32 s23, s23, {step}")
        if pat==4:
            a(f"  s_add_u32 s38, s38, {step}")
            a(f"  s_cmp_ge_u32 s38, {chunk}")
            a(f"  s_cselect_b32 s39, {3*chunk}, 0")
            a("  s_cselect_b32 s38, 0, s38")
            a("  s_add_u32 s23, s23, s39")
        if mode=="dma":
            a(f"  s_add_u32 s22, s22, {tile}")
            a("  s_cmp_ge_u32 s22, s19")
            a("  s_cselect_b32 s22, s18, s22")
    assert ntiles_wave % S == 0 or mode=="dma"
    for ph,srd in enumerate(["s[8:11]","s[12:15]"]):
        a("  s_mov_b32 s23, s16")
        a("  s_mov_b32 s38, 0")
        if ph==1: a("  s_memrealtime s[44:45]")
        if mode=="dma":
            a(f"  s_mov_b32 s25, {ntiles_wave}")
            a(f"L_loop{ph}:")
            if bar==2:
                a("  s_barrier")
                issue(srd,0)
                a(f"  s_waitcnt vmcnt({min(63,(S-1)*L)})")
                a("  s_barrier")
            else:
                a(f"  s_waitcnt vmcnt({min(63,(S-1-bar)*L)})")
                if bar: a("  s_barrier")
                issue(srd,0)
            if pk:
                a("  s_add_u32 s37, s37, 1")
                a(f"  s_cmp_lt_u32 s37, {pk}")
                a(f"  s_cbranch_scc1 L_nop{ph}")
                a("  s_mov_b32 s37, 0")
                a("  buffer_load_dwordx4 v12, s[32:35], s36 offen lds")
                a("  s_add_u32 s36, s36, 128")
                a("  s_and_b32 s36, s36, 0xc0fff")
                a(f"L_nop{ph}:")
            for _ in range(extra): a("  s_nop 15")
            a("  s_sub_u32 s25, s25, 1")
            a("  s_cmp_lg_u32 s25, 0")
            a(f"  s_cbranch_scc1 L_loop{ph}")
        else:
            a(f"  s_mov_b32 s25, {ntiles_wave//S}")
            a(f"L_loop{ph}:")
            for sl in range(S):
                a(f"  s_waitcnt vmcnt({min(63,(S-1)*L)})")
                issue(srd, 12+sl*L*4)
            a("  s_sub_u32 s25, s25, 1")
            a("  s_cmp_lg_u32 s25, 0")
            a(f"  s_cbranch_scc1 L_loop{ph}")
    a("  s_waitcnt vmcnt(0)")
    a("  s_barrier")
    a("  s_memrealtime s[42:43]")
    a("  s_getreg_b32 s46, hwreg(HW_REG_XCC_ID)")
    a("  s_cmp_lg_u32 s3, 0")
    a("  s_cbranch_scc1 L_done")
    a("  s_waitcnt lgkmcnt(0)")
    a("  v_mov_b32 v4, s40"); a("  v_mov_b32 v5, s41"); a("  v_mov_b32 v6, s42"); a("  v_mov_b32 v7, s43")
    a("  s_lshl_b32 s26, s2, 5")
    a("  s_add_u32 s26, s26, 0x20000000")
    a("  s_add_u32 s20, s20, s26")
    a("  s_addc_u32 s21, s21, 0")
    a("  v_mov_b32 v1, 0")
    a("  global_store_dwordx4 v1, v[4:7], s[20:21]")
    a("  v_mov_b32 v8, s44"); a("  v_mov_b32 v9, s45"); a("  v_mov_b32 v10, s46"); a("  v_mov_b32 v11, s2")
    a("  global_store_dwordx4 v1, v[8:11], s[20:21] offset:16")
    a("L_done:")
    a("  s_endpgm")
    nv = 16 if mode=="dma" else 12+S*L*4
    nv = max(nv,16)
    lds = W*S*tile if mode=="dma" else 0
    src = wrap(name,"\n".join(b),nv,64,(nv+3)//4*4,W*64)
    return src, lds
if __name__=="__main__":
    cfgs = eval(sys.argv[1])
    lines=[]
    for i,c in enumerate(cfgs):
        nm=f"st{i}"
        src,lds=gen(nm,**c)
        if "lds" in c: pass
        assemble(src,f"{nm}.co")
        lines.append(f"echo \"{c}\"; ./bench {nm}.co {nm}:{c.get('G',256)}:{c.get('W',4)*64}:{lds} 15 0 1 2")
    open("run.sh","w").write("\n".join(lines)+"\n")
    print(" ".join(f'"bench/st{i}.co",' for i in range(len(cfgs))))
```

```python
import sys
from asmlib import *
def gen(name, G=256, W=4, L=8, S=4, nt=0, mode="dma", pat=0, sc="", bar=0, extra=0, pk=0, pseg=128, chunk=32768, shiftk=0, shiftv=0):
    total = 512<<20
    per_wg = total//2//G
    tile = L*1024
    ntiles_wave = per_wg//(W*tile)
    assert ntiles_wave*W*tile==per_wg
    flags = (" nt" if nt else "")+sc
    b=[]
    a=b.append
    a(f"  s_cmp_ge_u32 s2, {G}")
    a("  s_cbranch_scc1 L_done")
    a("  s_memrealtime s[40:41]")
    a("  s_load_dwordx4 s[4:7], s[0:1], 8")
    a("  s_load_dwordx2 s[20:21], s[0:1], 56")
    a("  s_load_dwordx2 s[28:29], s[0:1], 24")
    a("  v_lshrrev_b32 v1, 6, v0")
    a("  v_and_b32 v2, 63, v0")
    a("  v_lshlrev_b32 v2, 4, v2")
    a("  s_nop 0")
    a("  v_readfirstlane_b32 s3, v1")
    a("  s_waitcnt lgkmcnt(0)")
    a("  s_mov_b32 s8, s4"); a("  s_mov_b32 s9, s5"); a("  s_mov_b32 s10, 0x10000000"); a("  s_mov_b32 s11, 0x20000")
    a("  s_mov_b32 s12, s6"); a("  s_mov_b32 s13, s7"); a("  s_mov_b32 s14, 0x10000000"); a("  s_mov_b32 s15, 0x20000")
    a("  s_mov_b32 s32, s28"); a("  s_mov_b32 s33, s29"); a("  s_mov_b32 s34, 0x100000"); a("  s_mov_b32 s35, 0x20000")
    a("  v_and_b32 v3, 63, v0")
    if pseg==128:
        a("  v_lshrrev_b32 v4, 3, v3"); a("  v_and_b32 v3, 7, v3")
    else:
        a("  v_lshrrev_b32 v4, 2, v3"); a("  v_and_b32 v3, 3, v3")
    a("  v_lshlrev_b32 v4, 14, v4"); a("  v_lshlrev_b32 v3, 4, v3"); a("  v_add_u32 v12, v3, v4")
    a("  s_lshr_b32 s36, s2, 3"); a("  s_lshl_b32 s36, s36, 8"); a("  s_lshl_b32 s37, s3, 18"); a("  s_add_u32 s36, s36, s37")
    a("  s_mov_b32 s37, 0")
    if pat==0:
        for reg,sh in (("s16",shiftk),("s27",shiftv)):
            a(f"  s_add_u32 s17, s2, {sh}")
            a("  s_and_b32 s17, s17, 7")
            a("  s_and_b32 s26, s2, 0xfffffff8")
            a("  s_or_b32 s26, s26, s17")
            a(f"  s_mul_i32 {reg}, s26, {per_wg}")
            a(f"  s_mul_i32 s17, s3, {tile}")
            a(f"  s_add_u32 {reg}, {reg}, s17")
        step = W*tile
    elif pat==1:
        a(f"  s_mul_i32 s16, s2, {per_wg}")
        a(f"  s_mul_i32 s17, s3, {per_wg//W}")
        a("  s_add_u32 s16, s16, s17")
        step = tile
    elif pat==2:
        a(f"  s_mul_i32 s16, s2, {W*tile}")
        a(f"  s_mul_i32 s17, s3, {tile}")
        a("  s_add_u32 s16, s16, s17")
        step = G*W*tile
    elif pat==4:
        a("  s_lshr_b32 s16, s2, 2")
        a("  s_lshl_b32 s16, s16, 22")
        a("  s_and_b32 s17, s2, 3")
        a(f"  s_mul_i32 s17, s17, {chunk}")
        a("  s_add_u32 s16, s16, s17")
        a(f"  s_mul_i32 s17, s3, {tile}")
        a("  s_add_u32 s16, s16, s17")
        step = W*tile
    elif pat==5:
        a(f"  s_mul_i32 s16, s2, {per_wg}")
        a(f"  s_mul_i32 s17, s3, {tile}")
        a("  s_add_u32 s16, s16, s17")
        step = W*tile
    elif pat==3:
        a("  s_lshr_b32 s16, s2, 2")
        a("  s_lshl_b32 s16, s16, 22")
        a("  s_and_b32 s17, s2, 3")
        a("  s_lshl_b32 s17, s17, 7")
        a("  s_add_u32 s16, s16, s17")
        a(f"  s_mul_i32 s17, s3, {tile*4}")
        a("  s_add_u32 s16, s16, s17")
        a("  v_and_b32 v3, 63, v0")
        a("  v_lshrrev_b32 v4, 3, v3")
        a("  v_lshlrev_b32 v4, 9, v4")
        a("  v_and_b32 v3, 7, v3")
        a("  v_lshlrev_b32 v3, 4, v3")
        a("  v_add_u32 v2, v3, v4")
        step = W*tile*4
    a(f"  s_mul_i32 s18, s3, {S*tile}")
    a(f"  s_add_u32 s19, s18, {S*tile}")
    a("  s_mov_b32 s22, s18")
    a("  s_mov_b32 s23, s16")
    total_tiles = 2*ntiles_wave
    def issue(srd, vbase):
        for i in range(L):
            if mode=="dma":
                if pat==3:
                    a(f"  s_add_u32 m0, s22, {i*1024}")
                    a(f"  s_add_u32 s24, s23, {i*4096}")
                    a(f"  buffer_load_dwordx4 v2, {srd}, s24 offen{flags} lds")
                else:
                    if i%4==0:
                        a(f"  s_add_u32 m0, s22, {i*1024}")
                        a(f"  s_add_u32 s24, s23, {i*1024}")
                    a(f"  buffer_load_dwordx4 v2, {srd}, s24 offen offset:{(i%4)*1024}{flags} lds")
            else:
                r=vbase+4*i
                if pat==3:
                    a(f"  s_add_u32 s24, s23, {i*4096}")
                    a(f"  buffer_load_dwordx4 v[{r}:{r+3}], v2, {srd}, s24 offen{flags}")
                else:
                    if i%4==0:
                        a(f"  s_add_u32 s24, s23, {i*1024}")
                    a(f"  buffer_load_dwordx4 v[{r}:{r+3}], v2, {srd}, s24 offen offset:{(i%4)*1024}{flags}")
        a(f"  s_add_u32 s23, s23, {step}")
        if pat==4:
            a(f"  s_add_u32 s38, s38, {step}")
            a(f"  s_cmp_ge_u32 s38, {chunk}")
            a(f"  s_cselect_b32 s39, {3*chunk}, 0")
            a("  s_cselect_b32 s38, 0, s38")
            a("  s_add_u32 s23, s23, s39")
        if mode=="dma":
            a(f"  s_add_u32 s22, s22, {tile}")
            a("  s_cmp_ge_u32 s22, s19")
            a("  s_cselect_b32 s22, s18, s22")
    assert ntiles_wave % S == 0 or mode=="dma"
    for ph,srd in enumerate(["s[8:11]","s[12:15]"]):
        a("  s_mov_b32 s23, s16" if (ph==0 or pat!=0) else "  s_mov_b32 s23, s27")
        a("  s_mov_b32 s38, 0")
        if ph==1: a("  s_memrealtime s[44:45]")
        if mode=="dma":
            a(f"  s_mov_b32 s25, {ntiles_wave}")
            a(f"L_loop{ph}:")
            if bar==2:
                a("  s_barrier")
                issue(srd,0)
                a(f"  s_waitcnt vmcnt({min(63,(S-1)*L)})")
                a("  s_barrier")
            else:
                a(f"  s_waitcnt vmcnt({min(63,(S-1-bar)*L)})")
                if bar: a("  s_barrier")
                issue(srd,0)
            if pk:
                a("  s_add_u32 s37, s37, 1")
                a(f"  s_cmp_lt_u32 s37, {pk}")
                a(f"  s_cbranch_scc1 L_nop{ph}")
                a("  s_mov_b32 s37, 0")
                a("  buffer_load_dwordx4 v12, s[32:35], s36 offen lds")
                a("  s_add_u32 s36, s36, 128")
                a("  s_and_b32 s36, s36, 0xc0fff")
                a(f"L_nop{ph}:")
            for _ in range(extra): a("  s_nop 15")
            a("  s_sub_u32 s25, s25, 1")
            a("  s_cmp_lg_u32 s25, 0")
            a(f"  s_cbranch_scc1 L_loop{ph}")
        else:
            a(f"  s_mov_b32 s25, {ntiles_wave//S}")
            a(f"L_loop{ph}:")
            for sl in range(S):
                a(f"  s_waitcnt vmcnt({min(63,(S-1)*L)})")
                issue(srd, 12+sl*L*4)
            a("  s_sub_u32 s25, s25, 1")
            a("  s_cmp_lg_u32 s25, 0")
            a(f"  s_cbranch_scc1 L_loop{ph}")
    a("  s_waitcnt vmcnt(0)")
    a("  s_barrier")
    a("  s_memrealtime s[42:43]")
    a("  s_getreg_b32 s46, hwreg(HW_REG_XCC_ID)")
    a("  s_cmp_lg_u32 s3, 0")
    a("  s_cbranch_scc1 L_done")
    a("  s_waitcnt lgkmcnt(0)")
    a("  v_mov_b32 v4, s40"); a("  v_mov_b32 v5, s41"); a("  v_mov_b32 v6, s42"); a("  v_mov_b32 v7, s43")
    a("  s_lshl_b32 s26, s2, 5")
    a("  s_add_u32 s26, s26, 0x20000000")
    a("  s_add_u32 s20, s20, s26")
    a("  s_addc_u32 s21, s21, 0")
    a("  v_mov_b32 v1, 0")
    a("  global_store_dwordx4 v1, v[4:7], s[20:21]")
    a("  v_mov_b32 v8, s44"); a("  v_mov_b32 v9, s45"); a("  v_mov_b32 v10, s46"); a("  v_mov_b32 v11, s2")
    a("  global_store_dwordx4 v1, v[8:11], s[20:21] offset:16")
    a("L_done:")
    a("  s_endpgm")
    nv = 16 if mode=="dma" else 12+S*L*4
    nv = max(nv,16)
    lds = W*S*tile if mode=="dma" else 0
    src = wrap(name,"\n".join(b),nv,64,(nv+3)//4*4,W*64)
    return src, lds
if __name__=="__main__":
    cfgs = eval(sys.argv[1])
    lines=[]
    for i,c in enumerate(cfgs):
        nm=f"st{i}"
        src,lds=gen(nm,**c)
        if "lds" in c: pass
        assemble(src,f"{nm}.co")
        lines.append(f"echo \"{c}\"; ./bench {nm}.co {nm}:{c.get('G',256)}:{c.get('W',4)*64}:{lds} 15 0 1 2")
    open("run.sh","w").write("\n".join(lines)+"\n")
    print(" ".join(f'"bench/st{i}.co",' for i in range(len(cfgs))))
```
